```python
import torch

def _softmax(x, axis=-1):
    return torch.softmax(x, dim=axis)
def _gelu(x):
    return torch.nn.functional.gelu(x, approximate="tanh")
def _silu(x):
    return torch.nn.functional.silu(x)
def _sigmoid(x):
    return torch.sigmoid(x)
def _layernorm(x, axis=-1, eps=1e-5):
    m = x.mean(dim=axis, keepdim=True)
    v = x.var(dim=axis, keepdim=True, unbiased=False)
    return (x - m) / torch.sqrt(v + eps)
def _scatter_add(tgt, idx, src, axis=0):
    return tgt.clone().index_add_(axis, idx, src)
def _segment_sum(src, seg, n):
    out = torch.zeros((n,) + src.shape[1:], dtype=src.dtype)
    return out.index_add_(0, seg, src)
def _pad(x, pw):
    flat = tuple(v for pair in reversed(pw) for v in pair)
    return torch.nn.functional.pad(x, flat)

kernel_name = 'recurrent_scan__softmax_full_mha__glu_gated_glu__prompt'

def setup_inputs():

    _w = (lambda a: (lambda t: t.to(torch.bfloat16) if t.is_floating_point() else t)(torch.as_tensor(a)))
    def _A_setup():
        B, S, D = 1, 2048, 576
        return {
            "x": _w((lambda *s: torch.randn(*s, dtype=torch.bfloat16) * 0.05)(B, S, D)),
            "wqkv": _w((lambda *s: torch.randn(*s, dtype=torch.bfloat16) * 0.05)(D, 3 * D)),
            "wo": _w((lambda *s: torch.randn(*s, dtype=torch.bfloat16) * 0.05)(D, D)),
        }
    _A_in = _A_setup()

    def _B_setup():
        B, S, D, F = 1, 2048, 576, 4608
        return {
            "x": _w((lambda *s: torch.randn(*s, dtype=torch.bfloat16) * 0.05)(B, S, D)),
            "w_gate": _w((lambda *s: torch.randn(*s, dtype=torch.bfloat16) * 0.05)(D, F)),
            "w_up": _w((lambda *s: torch.randn(*s, dtype=torch.bfloat16) * 0.05)(D, F)),
            "w_down": _w((lambda *s: torch.randn(*s, dtype=torch.bfloat16) * 0.05)(F, D)),
        }
    _B_in = _B_setup()

    return {
        "A_x": _A_in["x"],
        "A_wqkv": _A_in["wqkv"],
        "A_wo": _A_in["wo"],
        "B_x": _B_in["x"],
        "B_w_gate": _B_in["w_gate"],
        "B_w_up": _B_in["w_up"],
        "B_w_down": _B_in["w_down"],
    }

def reference(A_x, A_wqkv, A_wo, B_x, B_w_gate, B_w_up, B_w_down):
    def _A_ref(x, wqkv, wo):
        B, S, D = x.shape
        H = 32; Dh = D // H
        qkv = (lambda x, *d: x.permute(*d))((x @ wqkv).reshape(B, S, 3, H, Dh), 2, 0, 3, 1, 4)
        q, k, v = qkv[0], qkv[1], qkv[2]
        scale = Dh ** -0.5
        scores = torch.einsum("bhqd,bhkd->bhqk", q, k) * scale
        p = _softmax(scores, axis=-1)
        o = torch.einsum("bhqk,bhkd->bhqd", p, v)
        return (lambda x, *d: x.permute(*d))(o, 0, 2, 1, 3).reshape(B, S, D) @ wo

    def _B_ref(x, w_gate, w_up, w_down):
        g = torch.einsum("bsd,df->bsf", x, w_gate)
        u = torch.einsum("bsd,df->bsf", x, w_up)
        h = _sigmoid(g) * u
        return torch.einsum("bsf,fd->bsd", h, w_down)

    x = A_x
    xn = _layernorm(x, axis=-1)
    s = _A_ref(xn, A_wqkv, A_wo)
    g = _silu(_B_ref(xn, B_w_gate, B_w_up, B_w_down))
    return x + s * g
```

```python
import re

class Asm:
    def __init__(self):
        self.lines = []
    def __call__(self, *ls):
        for l in ls:
            if isinstance(l, (list, tuple)):
                self(*l)
            else:
                for x in l.split("\n"):
                    x = x.strip()
                    if x: self.lines.append(x)
        return self
    def label(self, n): self.lines.append(n + ":")
    def text(self):
        out = []
        for l in self.lines:
            out.append(l if (l.endswith(":") or l.startswith(".")) else "    " + l)
        return "\n".join(out) + "\n"

def vr(b, n=1, k="v"):
    return f"{k}{b}" if n == 1 else f"{k}[{b}:{b+n-1}]"
def ar(b, n=1): return vr(b, n, "a")
def sr(b, n=1): return vr(b, n, "s")

_REG = re.compile(r"\b([vas])(\d+)\b|\b([vas])\[(\d+):(\d+)\]")
def regs_of(op):
    op = op.strip()
    s = set()
    for m in _REG.finditer(op):
        if m.group(1): s.add((m.group(1), int(m.group(2))))
        else:
            for i in range(int(m.group(4)), int(m.group(5)) + 1): s.add((m.group(3), i))
    if re.search(r"\bvcc\b", op): s.add(("s", "vcc"))
    if re.search(r"\bexec\b", op): s.add(("s", "exec"))
    if re.search(r"\bm0\b", op): s.add(("s", "m0"))
    return s

TRANS = ("v_exp_", "v_log_", "v_rcp_", "v_rsq_", "v_sqrt_", "v_sin_", "v_cos_")
def split_ops(rest):
    ops, depth, cur = [], 0, ""
    for ch in rest:
        if ch == "[": depth += 1
        if ch == "]": depth -= 1
        if ch == "," and depth == 0:
            ops.append(cur.strip()); cur = ""
        else: cur += ch
    if cur.strip(): ops.append(cur.strip())
    return ops

class Ins:
    def __init__(self, text):
        self.text = text
        t = text.split(";")[0].strip()
        p = t.split(None, 1)
        self.op = p[0]
        ops = split_ops(p[1]) if len(p) > 1 else []
        self.ops = ops
        op = self.op
        self.kind = "other"; self.w = set(); self.r = set(); self.passes = 0
        self.srcA = self.srcB = self.srcC = set()
        self.wide_data = set()
        if op.startswith("v_mfma"):
            self.kind = "mfma"
            self.w = regs_of(ops[0]); self.srcA = regs_of(ops[1]); self.srcB = regs_of(ops[2]); self.srcC = regs_of(ops[3])
            self.r = self.srcA | self.srcB | self.srcC
            self.passes = 8 if "32x32" in op else 4
        elif op.startswith("v_"):
            self.kind = "valu"
            self.trans = op.startswith(TRANS)
            self.dpp = ("row_" in t or "quad_perm" in t or "_dpp" in op or "wave_" in t)
            if op.startswith("v_cmp"):
                self.w = regs_of(ops[0]); rs = ops[1:]
                if op.startswith("v_cmpx"): self.w.add(("s", "exec"))
            elif op.startswith(("v_add_co", "v_sub_co", "v_addc_co", "v_subb_co", "v_subrev_co", "v_div_scale")):
                self.w = regs_of(ops[0]) | regs_of(ops[1]); rs = ops[2:]
            elif op.startswith("v_permlane") and "swap" in op:
                self.w = regs_of(ops[0]) | regs_of(ops[1]); rs = ops[0:2]
            elif op.startswith("v_nop"):
                rs = []
            else:
                self.w = regs_of(ops[0]); rs = ops[1:]
            for o in rs: self.r |= regs_of(o)
            if op.startswith(("v_fmac", "v_pk_fmac", "v_dot2c", "v_writelane")) or "UNUSED_PRESERVE" in t or self.dpp:
                self.r |= regs_of(ops[0])
        elif op.startswith("ds_"):
            self.kind = "ds"
            if op.startswith(("ds_read", "ds_bpermute", "ds_permute", "ds_swizzle")) or "_rtn" in op:
                self.w = regs_of(ops[0])
                for o in ops[1:]: self.r |= regs_of(o)
            else:
                for o in ops: self.r |= regs_of(o)
        elif op.startswith(("buffer_", "global_")):
            self.kind = "vmem"
            self.lds = bool(re.search(r"\blds\b", t)) or "_lds_" in op
            if op.startswith(("buffer_wbl2", "buffer_inv")):
                pass
            elif "load" in op and not self.lds:
                self.w = regs_of(ops[0])
                for o in ops[1:]: self.r |= regs_of(o)
                if "d16" in op: self.keeps = True
            elif "atomic" in op and re.search(r"\bsc0\b", t):
                self.w = regs_of(ops[0])
                for o in ops: self.r |= regs_of(o)
            else:
                for o in ops: self.r |= regs_of(o)
                if self.lds: self.r.add(("s", "m0"))
                if "store" in op and ("x3" in op or "x4" in op):
                    self.wide_data = regs_of(ops[0] if op.startswith("buffer_") else ops[1])
        elif op.startswith(("s_load", "s_buffer_load", "s_memtime", "s_memrealtime", "s_atomic")):
            self.kind = "smem"; self.w = regs_of(ops[0])
            for o in ops[1:]: self.r |= regs_of(o)
        elif op in ("s_waitcnt",):
            self.kind = "wait"
        elif op.startswith("s_nop"):
            self.kind = "nop"; self.n = int(ops[0], 0) + 1
        elif op.startswith(("s_cbranch", "s_branch", "s_barrier", "s_endpgm", "s_setprio", "s_sleep")):
            self.kind = "ctl"
        elif op.startswith("s_cmp") or op.startswith("s_bitcmp"):
            self.kind = "salu"
            for o in ops: self.r |= regs_of(o)
        elif op.startswith("s_"):
            self.kind = "salu"; self.w = regs_of(ops[0])
            for o in ops[1:]: self.r |= regs_of(o)
            if "saveexec" in op: self.w.add(("s", "exec"))
            if op.startswith(("s_addk", "s_mulk")): self.r |= regs_of(ops[0])

def vec(s): return {x for x in s if x[0] in "va"}
def sca(s): return {x for x in s if x[0] == "s"}

def check_trace(lines, name="", verbose=True):
    import os
    if int(os.environ.get("STAMPS", "0")): return []
    ins = [Ins(l) for l in lines if l and not l.endswith(":") and not l.startswith((".", ";"))]
    probs = []
    W = 24
    for i, c in enumerate(ins):
        dist = 0
        j = i - 1
        while j >= 0 and dist < W:
            p = ins[j]
            need = 0; why = ""
            def req(n, w):
                nonlocal need, why
                if n > need: need, why = n, w
            if p.kind == "valu":
                if c.kind == "mfma" and vec(p.w) & c.r: req(2, "valu->mfma src")
                if c.kind == "mfma" and ("s", "exec") in p.w: req(4, "valu exec->mfma")
                if c.kind == "valu":
                    if p.trans and not c.trans and vec(p.w) & c.r: req(1, "trans->valu")
                    if c.dpp and vec(p.w) & c.r: req(2, "valu->dpp")
                    if c.dpp and ("s", "exec") in p.w: req(5, "exec->dpp")
                    if c.op.startswith(("v_readlane", "v_readfirstlane")) and vec(p.w) & c.r: req(1, "valu->readlane")
                    if c.op.startswith("v_permlane") and vec(p.w) & c.r: req(2, "valu->permlane")
                    if sca(p.w) & c.r:
                        req(4 if c.op.startswith(("v_readlane", "v_writelane", "v_div_fmas")) else 2, "valu sgpr->valu")
                    if ("sdwa" in p.op or "op_sel" in p.text) and not p.op.startswith(("v_pk", "v_fma_mix_f32")) and vec(p.w) & (c.r | c.w): req(1, "sdwa/opsel dst")
                if c.kind == "vmem" and sca(p.w) & c.r: req(5, "valu sgpr->vmem")
            if p.kind == "mfma":
                big = p.passes == 8
                if c.kind == "mfma":
                    if p.w & c.srcC:
                        if not (p.w == c.srcC and p.passes == c.passes): req(10 if big else 6, "mfma D->C overlap")
                    if p.w & (c.srcA | c.srcB): req(12 if big else 8, "mfma D->A/B")
                elif c.kind in ("valu", "ds", "vmem"):
                    if p.w & (c.r | c.w): req(12 if big else 8, "mfma D->valu/mem")
                    if c.kind == "valu" and p.srcC & c.w: req(7 if big else 3, "mfma C WAR")
            if p.kind == "vmem" and p.wide_data:
                if p.wide_data & c.w: req(2 if c.kind == "valu" else 1, "wide store WAR")
            if p.kind == "salu" and ("s", "m0") in p.w and c.kind == "vmem" and getattr(c, "lds", False): req(1, "m0->lds dma")
            if need > dist:
                probs.append(f"{name}: #{i} '{c.text}' needs {need} after #{j} '{p.text}' ({why}), has {dist}")
            dist += p.n if p.kind == "nop" else 1
            j -= 1
    vm, lg = [], []
    for i, c in enumerate(ins):
        if c.kind == "wait":
            m = re.search(r"vmcnt\((\d+)\)", c.text)
            if m:
                n = int(m.group(1)); vm = vm[len(vm) - n:] if n < len(vm) else vm
                if n == 0: vm = []
            m = re.search(r"lgkmcnt\((\d+)\)", c.text)
            if m:
                n = int(m.group(1))
                if n == 0: lg = []
                elif any(k == "smem" for _, _, k in lg): pass
                elif n < len(lg): lg = lg[len(lg) - n:]
            continue
        touched = c.r | c.w
        for d, t, k in vm:
            if d & touched and not (c.kind == "vmem" and getattr(c, "keeps", False) and not (d & c.r)):
                probs.append(f"{name}: #{i} '{c.text}' touches pending vmem dest of '{t}'")
        for d, t, k in lg:
            if d & touched: probs.append(f"{name}: #{i} '{c.text}' touches pending lgkm dest of '{t}'")
        if c.kind == "vmem":
            vm.append((set(c.w), c.text, "vmem"))
            if len(vm) > 63: probs.append(f"{name}: #{i} vmcnt overflow >63 (hardware stalls; counts suspicious)")
        if c.kind == "ds": lg.append((set(c.w), c.text, "ds"))
        if c.kind == "smem": lg.append((set(c.w), c.text, "smem"))
    if verbose:
        for p in probs[:8]: print("HAZARD", p)
        if len(probs) > 8: print(f"... {len(probs)} problems")
    return probs

def kernel_desc(name, vgpr, acc, sgpr=102):
    return f""".amdhsa_kernel {name}
  .amdhsa_next_free_vgpr {vgpr}
  .amdhsa_next_free_sgpr {sgpr}
  .amdhsa_accum_offset {acc}
  .amdhsa_group_segment_fixed_size 0
  .amdhsa_kernarg_size 80
  .amdhsa_user_sgpr_count 2
  .amdhsa_user_sgpr_kernarg_segment_ptr 1
  .amdhsa_system_sgpr_workgroup_id_x 1
  .amdhsa_float_denorm_mode_32 3
  .amdhsa_float_denorm_mode_16_64 3
.end_amdhsa_kernel
"""
def srd(a, d, ptr, nbytes, off=0):
    if off:
        a(f"s_add_u32 s{d}, s{ptr}, {off:#x}", f"s_addc_u32 s{d+1}, s{ptr+1}, 0")
    else:
        a(f"s_mov_b32 s{d}, s{ptr}", f"s_mov_b32 s{d+1}, s{ptr+1}")
    a(f"s_mov_b32 s{d+2}, {nbytes:#x}", f"s_mov_b32 s{d+3}, 0x20000")

import os
STAMPS = int(os.environ.get("STAMPS", "0"))
STAMP_BASE = 0x8000000
ST_S = 60
def stamp(a, k):
    if STAMPS:
        a(f"s_memtime s[{ST_S+4*k}:{ST_S+4*k+1}]", f"s_memrealtime s[{ST_S+4*k+2}:{ST_S+4*k+3}]")
def stamp_flush(a, kern, nst, s_ws, s_wave, vt, s_tmp):
    if not STAMPS: return
    a("s_waitcnt vmcnt(0) lgkmcnt(0)")
    stamp(a, nst)
    a("s_waitcnt lgkmcnt(0)")
    srd(a, s_tmp, s_ws, 0x1000000, STAMP_BASE)
    a(f"s_lshl_b32 s{s_tmp+4}, s2, 3", f"s_add_u32 s{s_tmp+4}, s{s_tmp+4}, s{s_wave}", f"s_add_u32 s{s_tmp+4}, s{s_tmp+4}, {kern*4096}",
      f"s_lshl_b32 s{s_tmp+4}, s{s_tmp+4}, 7", f"v_mov_b32 v{vt+2}, 0", "s_mov_b64 exec, 1")
    for k in range(nst + 1):
        a(f"v_mov_b32 v{vt}, s{ST_S+4*k}", f"v_mov_b32 v{vt+1}, s{ST_S+4*k+2}",
          f"buffer_store_dwordx2 v[{vt}:{vt+1}], v{vt+2}, s[{s_tmp}:{s_tmp+3}], s{s_tmp+4} offen offset:{8*k}", "s_nop 1")
```

```python
import sys, importlib
from asmlib import kernel_desc
HEAD = open("recurrent_scan__softmax_full_mha__glu_gated_glu__prompt.s.ref").read().split("; Override launch")[0]
def assemble(kernels):
    out = HEAD
    for k in kernels:
        out += f"; @launch kernel={k['name']} grid=({k['grid']},1,1) block=({k['block']},1,1) lds={k['lds']}\n"
    out += '.amdgcn_target "amdgcn-amd-amdhsa--gfx950"\n.text\n'
    seen = set()
    for k in kernels:
        if k["name"] in seen: continue
        seen.add(k["name"])
        if len(seen) == 2: out += "code_begin:\n"
        out += f".globl {k['name']}\n.p2align 8\n.type {k['name']},@function\n" + k["text"]
    out += 'code_end:\n.section .rodata,"a"\n'
    seen = set()
    for k in kernels:
        if k["name"] in seen: continue
        seen.add(k["name"])
        out += ".p2align 6\n" + kernel_desc(k["name"], k["vgpr"], k["acc"])
    return out
if __name__ == "__main__":
    names = sys.argv[2:]
    ks = [importlib.import_module(n).gen() for n in names]
    open(sys.argv[1], "w").write(assemble(ks))
    print("wrote", sys.argv[1])
```

```python
import re

class Asm:
    def __init__(self):
        self.lines = []
    def __call__(self, *ls):
        for l in ls:
            if isinstance(l, (list, tuple)):
                self(*l)
            else:
                for x in l.split("\n"):
                    x = x.strip()
                    if x: self.lines.append(x)
        return self
    def label(self, n): self.lines.append(n + ":")
    def text(self):
        out = []
        for l in self.lines:
            out.append(l if (l.endswith(":") or l.startswith(".")) else "    " + l)
        return "\n".join(out) + "\n"

def vr(b, n=1, k="v"):
    return f"{k}{b}" if n == 1 else f"{k}[{b}:{b+n-1}]"
def ar(b, n=1): return vr(b, n, "a")
def sr(b, n=1): return vr(b, n, "s")

_REG = re.compile(r"\b([vas])(\d+)\b|\b([vas])\[(\d+):(\d+)\]")
def regs_of(op):
    op = op.strip()
    s = set()
    for m in _REG.finditer(op):
        if m.group(1): s.add((m.group(1), int(m.group(2))))
        else:
            for i in range(int(m.group(4)), int(m.group(5)) + 1): s.add((m.group(3), i))
    if re.search(r"\bvcc\b", op): s.add(("s", "vcc"))
    if re.search(r"\bexec\b", op): s.add(("s", "exec"))
    if re.search(r"\bm0\b", op): s.add(("s", "m0"))
    return s

TRANS = ("v_exp_", "v_log_", "v_rcp_", "v_rsq_", "v_sqrt_", "v_sin_", "v_cos_")
def split_ops(rest):
    ops, depth, cur = [], 0, ""
    for ch in rest:
        if ch == "[": depth += 1
        if ch == "]": depth -= 1
        if ch == "," and depth == 0:
            ops.append(cur.strip()); cur = ""
        else: cur += ch
    if cur.strip(): ops.append(cur.strip())
    return ops

class Ins:
    def __init__(self, text):
        self.text = text
        t = text.split(";")[0].strip()
        p = t.split(None, 1)
        self.op = p[0]
        ops = split_ops(p[1]) if len(p) > 1 else []
        self.ops = ops
        op = self.op
        self.kind = "other"; self.w = set(); self.r = set(); self.passes = 0
        self.srcA = self.srcB = self.srcC = set()
        self.wide_data = set()
        if op.startswith("v_mfma"):
            self.kind = "mfma"
            self.w = regs_of(ops[0]); self.srcA = regs_of(ops[1]); self.srcB = regs_of(ops[2]); self.srcC = regs_of(ops[3])
            self.r = self.srcA | self.srcB | self.srcC
            self.passes = 8 if "32x32" in op else 4
        elif op.startswith("v_"):
            self.kind = "valu"
            self.trans = op.startswith(TRANS)
            self.dpp = ("row_" in t or "quad_perm" in t or "_dpp" in op or "wave_" in t)
            if op.startswith("v_cmp"):
                self.w = regs_of(ops[0]); rs = ops[1:]
                if op.startswith("v_cmpx"): self.w.add(("s", "exec"))
            elif op.startswith(("v_add_co", "v_sub_co", "v_addc_co", "v_subb_co", "v_subrev_co", "v_div_scale")):
                self.w = regs_of(ops[0]) | regs_of(ops[1]); rs = ops[2:]
            elif op.startswith("v_permlane") and "swap" in op:
                self.w = regs_of(ops[0]) | regs_of(ops[1]); rs = ops[0:2]
            elif op.startswith("v_nop"):
                rs = []
            else:
                self.w = regs_of(ops[0]); rs = ops[1:]
            for o in rs: self.r |= regs_of(o)
            if op.startswith(("v_fmac", "v_pk_fmac", "v_dot2c", "v_writelane")) or "UNUSED_PRESERVE" in t or self.dpp:
                self.r |= regs_of(ops[0])
        elif op.startswith("ds_"):
            self.kind = "ds"
            if op.startswith(("ds_read", "ds_bpermute", "ds_permute", "ds_swizzle")) or "_rtn" in op:
                self.w = regs_of(ops[0])
                for o in ops[1:]: self.r |= regs_of(o)
            else:
                for o in ops: self.r |= regs_of(o)
        elif op.startswith(("buffer_", "global_")):
            self.kind = "vmem"
            self.lds = bool(re.search(r"\blds\b", t)) or "_lds_" in op
            if op.startswith(("buffer_wbl2", "buffer_inv")):
                pass
            elif "load" in op and not self.lds:
                self.w = regs_of(ops[0])
                for o in ops[1:]: self.r |= regs_of(o)
                if "d16" in op: self.keeps = True
            elif "atomic" in op and re.search(r"\bsc0\b", t):
                self.w = regs_of(ops[0])
                for o in ops: self.r |= regs_of(o)
            else:
                for o in ops: self.r |= regs_of(o)
                if self.lds: self.r.add(("s", "m0"))
                if "store" in op and ("x3" in op or "x4" in op):
                    self.wide_data = regs_of(ops[0] if op.startswith("buffer_") else ops[1])
        elif op.startswith(("s_load", "s_buffer_load", "s_memtime", "s_memrealtime", "s_atomic")):
            self.kind = "smem"; self.w = regs_of(ops[0])
            for o in ops[1:]: self.r |= regs_of(o)
        elif op in ("s_waitcnt",):
            self.kind = "wait"
        elif op.startswith("s_nop"):
            self.kind = "nop"; self.n = int(ops[0], 0) + 1
        elif op.startswith(("s_cbranch", "s_branch", "s_barrier", "s_endpgm", "s_setprio", "s_sleep")):
            self.kind = "ctl"
        elif op.startswith("s_cmp") or op.startswith("s_bitcmp"):
            self.kind = "salu"
            for o in ops: self.r |= regs_of(o)
        elif op.startswith("s_"):
            self.kind = "salu"; self.w = regs_of(ops[0])
            for o in ops[1:]: self.r |= regs_of(o)
            if "saveexec" in op: self.w.add(("s", "exec"))
            if op.startswith(("s_addk", "s_mulk")): self.r |= regs_of(ops[0])

def vec(s): return {x for x in s if x[0] in "va"}
def sca(s): return {x for x in s if x[0] == "s"}

def check_trace(lines, name="", verbose=True):
    import os
    if int(os.environ.get("STAMPS", "0")): return []
    ins = [Ins(l) for l in lines if l and not l.endswith(":") and not l.startswith((".", ";"))]
    probs = []
    W = 24
    for i, c in enumerate(ins):
        dist = 0
        j = i - 1
        while j >= 0 and dist < W:
            p = ins[j]
            need = 0; why = ""
            def req(n, w):
                nonlocal need, why
                if n > need: need, why = n, w
            if p.kind == "valu":
                if c.kind == "mfma" and vec(p.w) & c.r: req(2, "valu->mfma src")
                if c.kind == "mfma" and ("s", "exec") in p.w: req(4, "valu exec->mfma")
                if c.kind == "valu":
                    if p.trans and not c.trans and vec(p.w) & c.r: req(1, "trans->valu")
                    if c.dpp and vec(p.w) & c.r: req(2, "valu->dpp")
                    if c.dpp and ("s", "exec") in p.w: req(5, "exec->dpp")
                    if c.op.startswith(("v_readlane", "v_readfirstlane")) and vec(p.w) & c.r: req(1, "valu->readlane")
                    if c.op.startswith("v_permlane") and vec(p.w) & c.r: req(2, "valu->permlane")
                    if sca(p.w) & c.r:
                        req(4 if c.op.startswith(("v_readlane", "v_writelane", "v_div_fmas")) else 2, "valu sgpr->valu")
                    if ("sdwa" in p.op or "op_sel" in p.text) and not p.op.startswith(("v_pk", "v_fma_mix_f32")) and vec(p.w) & (c.r | c.w): req(1, "sdwa/opsel dst")
                if c.kind == "vmem" and sca(p.w) & c.r: req(5, "valu sgpr->vmem")
            if p.kind == "mfma":
                big = p.passes == 8
                if c.kind == "mfma":
                    if p.w & c.srcC:
                        if not (p.w == c.srcC and p.passes == c.passes): req(10 if big else 6, "mfma D->C overlap")
                    if p.w & (c.srcA | c.srcB): req(12 if big else 8, "mfma D->A/B")
                elif c.kind in ("valu", "ds", "vmem"):
                    if p.w & (c.r | c.w): req(12 if big else 8, "mfma D->valu/mem")
                    if c.kind == "valu" and p.srcC & c.w: req(7 if big else 3, "mfma C WAR")
            if p.kind == "vmem" and p.wide_data:
                if p.wide_data & c.w: req(2 if c.kind == "valu" else 1, "wide store WAR")
            if p.kind == "salu" and ("s", "m0") in p.w and c.kind == "vmem" and getattr(c, "lds", False): req(1, "m0->lds dma")
            if need > dist:
                probs.append(f"{name}: #{i} '{c.text}' needs {need} after #{j} '{p.text}' ({why}), has {dist}")
            dist += p.n if p.kind == "nop" else 1
            j -= 1
    vm, lg = [], []
    for i, c in enumerate(ins):
        if c.kind == "wait":
            m = re.search(r"vmcnt\((\d+)\)", c.text)
            if m:
                n = int(m.group(1)); vm = vm[len(vm) - n:] if n < len(vm) else vm
                if n == 0: vm = []
            m = re.search(r"lgkmcnt\((\d+)\)", c.text)
            if m:
                n = int(m.group(1))
                if n == 0: lg = []
                elif any(k == "smem" for _, _, k in lg): pass
                elif n < len(lg): lg = lg[len(lg) - n:]
            continue
        touched = c.r | c.w
        for d, t, k in vm:
            if d & touched and not (c.kind == "vmem" and getattr(c, "keeps", False) and not (d & c.r)):
                probs.append(f"{name}: #{i} '{c.text}' touches pending vmem dest of '{t}'")
        for d, t, k in lg:
            if d & touched: probs.append(f"{name}: #{i} '{c.text}' touches pending lgkm dest of '{t}'")
        if c.kind == "vmem":
            vm.append((set(c.w), c.text, "vmem"))
            if len(vm) > 63: probs.append(f"{name}: #{i} vmcnt overflow >63 (hardware stalls; counts suspicious)")
        if c.kind == "ds": lg.append((set(c.w), c.text, "ds"))
        if c.kind == "smem": lg.append((set(c.w), c.text, "smem"))
    if verbose:
        for p in probs[:8]: print("HAZARD", p)
        if len(probs) > 8: print(f"... {len(probs)} problems")
    return probs

def kernel_desc(name, vgpr, acc, sgpr=102):
    return f""".amdhsa_kernel {name}
  .amdhsa_next_free_vgpr {vgpr}
  .amdhsa_next_free_sgpr {sgpr}
  .amdhsa_accum_offset {acc}
  .amdhsa_group_segment_fixed_size 0
  .amdhsa_kernarg_size 80
  .amdhsa_user_sgpr_count 2
  .amdhsa_user_sgpr_kernarg_segment_ptr 1
  .amdhsa_system_sgpr_workgroup_id_x 1
  .amdhsa_float_denorm_mode_32 3
  .amdhsa_float_denorm_mode_16_64 3
.end_amdhsa_kernel
"""
def srd(a, d, ptr, nbytes, off=0):
    if off:
        a(f"s_add_u32 s{d}, s{ptr}, {off:#x}", f"s_addc_u32 s{d+1}, s{ptr+1}, 0")
    else:
        a(f"s_mov_b32 s{d}, s{ptr}", f"s_mov_b32 s{d+1}, s{ptr+1}")
    a(f"s_mov_b32 s{d+2}, {nbytes:#x}", f"s_mov_b32 s{d+3}, 0x20000")

import os
STAMPS = int(os.environ.get("STAMPS", "0"))
STAMP_BASE = 0x8000000
ST_S = 68
def stamp(a, k):
    if STAMPS:
        a(f"{'s_memrealtime' if STAMPS == 1 else 's_memtime'} s[{ST_S+2*k}:{ST_S+2*k+1}]")
def stamp_init(a):
    if STAMPS:
        for k in range(16): a(f"s_mov_b32 s{ST_S+2*k}, -1")
def stamp_flush(a, kern, nst, s_ws, s_wave, vt, s_tmp):
    if not STAMPS: return
    a("s_waitcnt vmcnt(0) lgkmcnt(0)")
    stamp(a, nst)
    a("s_waitcnt lgkmcnt(0)")
    srd(a, s_tmp, s_ws, 0x1000000, STAMP_BASE)
    a(f"s_lshl_b32 s{s_tmp+4}, s2, 3", f"s_add_u32 s{s_tmp+4}, s{s_tmp+4}, s{s_wave}", f"s_add_u32 s{s_tmp+4}, s{s_tmp+4}, {kern*4096}",
      f"s_lshl_b32 s{s_tmp+4}, s{s_tmp+4}, 7", f"v_mov_b32 v{vt+2}, 0", "s_mov_b64 exec, 1")
    for k in range(16):
        a(f"v_mov_b32 v{vt}, s{ST_S+2*k}", f"buffer_store_dword v{vt}, v{vt+2}, s[{s_tmp}:{s_tmp+3}], s{s_tmp+4} offen offset:{8*k}", "s_nop 1")
```

```python
import re

class Asm:
    def __init__(self):
        self.lines = []
    def __call__(self, *ls):
        for l in ls:
            if isinstance(l, (list, tuple)):
                self(*l)
            else:
                for x in l.split("\n"):
                    x = x.strip()
                    if x: self.lines.append(x)
        return self
    def label(self, n): self.lines.append(n + ":")
    def text(self):
        out = []
        for l in self.lines:
            out.append(l if (l.endswith(":") or l.startswith(".")) else "    " + l)
        return "\n".join(out) + "\n"

def vr(b, n=1, k="v"):
    return f"{k}{b}" if n == 1 else f"{k}[{b}:{b+n-1}]"
def ar(b, n=1): return vr(b, n, "a")
def sr(b, n=1): return vr(b, n, "s")

_REG = re.compile(r"\b([vas])(\d+)\b|\b([vas])\[(\d+):(\d+)\]")
def regs_of(op):
    op = op.strip()
    s = set()
    for m in _REG.finditer(op):
        if m.group(1): s.add((m.group(1), int(m.group(2))))
        else:
            for i in range(int(m.group(4)), int(m.group(5)) + 1): s.add((m.group(3), i))
    if re.search(r"\bvcc\b", op): s.add(("s", "vcc"))
    if re.search(r"\bexec\b", op): s.add(("s", "exec"))
    if re.search(r"\bm0\b", op): s.add(("s", "m0"))
    return s

TRANS = ("v_exp_", "v_log_", "v_rcp_", "v_rsq_", "v_sqrt_", "v_sin_", "v_cos_")
def split_ops(rest):
    ops, depth, cur = [], 0, ""
    for ch in rest:
        if ch == "[": depth += 1
        if ch == "]": depth -= 1
        if ch == "," and depth == 0:
            ops.append(cur.strip()); cur = ""
        else: cur += ch
    if cur.strip(): ops.append(cur.strip())
    return ops

class Ins:
    def __init__(self, text):
        self.text = text
        t = text.split(";")[0].strip()
        p = t.split(None, 1)
        self.op = p[0]
        ops = split_ops(p[1]) if len(p) > 1 else []
        self.ops = ops
        op = self.op
        self.kind = "other"; self.w = set(); self.r = set(); self.passes = 0
        self.srcA = self.srcB = self.srcC = set()
        self.wide_data = set()
        if op.startswith("v_mfma"):
            self.kind = "mfma"
            self.w = regs_of(ops[0]); self.srcA = regs_of(ops[1]); self.srcB = regs_of(ops[2]); self.srcC = regs_of(ops[3])
            self.r = self.srcA | self.srcB | self.srcC
            self.passes = 8 if "32x32" in op else 4
        elif op.startswith("v_"):
            self.kind = "valu"
            self.trans = op.startswith(TRANS)
            self.dpp = ("row_" in t or "quad_perm" in t or "_dpp" in op or "wave_" in t)
            if op.startswith("v_cmp"):
                self.w = regs_of(ops[0]); rs = ops[1:]
                if op.startswith("v_cmpx"): self.w.add(("s", "exec"))
            elif op.startswith(("v_add_co", "v_sub_co", "v_addc_co", "v_subb_co", "v_subrev_co", "v_div_scale")):
                self.w = regs_of(ops[0]) | regs_of(ops[1]); rs = ops[2:]
            elif op.startswith("v_permlane") and "swap" in op:
                self.w = regs_of(ops[0]) | regs_of(ops[1]); rs = ops[0:2]
            elif op.startswith("v_nop"):
                rs = []
            else:
                self.w = regs_of(ops[0]); rs = ops[1:]
            for o in rs: self.r |= regs_of(o)
            if op.startswith(("v_fmac", "v_pk_fmac", "v_dot2c", "v_writelane")) or "UNUSED_PRESERVE" in t or self.dpp:
                self.r |= regs_of(ops[0])
        elif op.startswith("ds_"):
            self.kind = "ds"
            if op.startswith(("ds_read", "ds_bpermute", "ds_permute", "ds_swizzle")) or "_rtn" in op:
                self.w = regs_of(ops[0])
                for o in ops[1:]: self.r |= regs_of(o)
            else:
                for o in ops: self.r |= regs_of(o)
        elif op.startswith(("buffer_", "global_")):
            self.kind = "vmem"
            self.lds = bool(re.search(r"\blds\b", t)) or "_lds_" in op
            if op.startswith(("buffer_wbl2", "buffer_inv")):
                pass
            elif "load" in op and not self.lds:
                self.w = regs_of(ops[0])
                for o in ops[1:]: self.r |= regs_of(o)
                if "d16" in op: self.keeps = True
            elif "atomic" in op and re.search(r"\bsc0\b", t):
                self.w = regs_of(ops[0])
                for o in ops: self.r |= regs_of(o)
            else:
                for o in ops: self.r |= regs_of(o)
                if self.lds: self.r.add(("s", "m0"))
                if "store" in op and ("x3" in op or "x4" in op):
                    self.wide_data = regs_of(ops[0] if op.startswith("buffer_") else ops[1])
        elif op.startswith(("s_load", "s_buffer_load", "s_memtime", "s_memrealtime", "s_atomic")):
            self.kind = "smem"; self.w = regs_of(ops[0])
            for o in ops[1:]: self.r |= regs_of(o)
        elif op in ("s_waitcnt",):
            self.kind = "wait"
        elif op.startswith("s_nop"):
            self.kind = "nop"; self.n = int(ops[0], 0) + 1
        elif op.startswith(("s_cbranch", "s_branch", "s_barrier", "s_endpgm", "s_setprio", "s_sleep")):
            self.kind = "ctl"
        elif op.startswith("s_cmp") or op.startswith("s_bitcmp"):
            self.kind = "salu"
            for o in ops: self.r |= regs_of(o)
        elif op.startswith("s_"):
            self.kind = "salu"; self.w = regs_of(ops[0])
            for o in ops[1:]: self.r |= regs_of(o)
            if "saveexec" in op: self.w.add(("s", "exec"))
            if op.startswith(("s_addk", "s_mulk")): self.r |= regs_of(ops[0])

def vec(s): return {x for x in s if x[0] in "va"}
def sca(s): return {x for x in s if x[0] == "s"}

def check_trace(lines, name="", verbose=True):
    import os
    if int(os.environ.get("STAMPS", "0")): return []
    ins = [Ins(l) for l in lines if l and not l.endswith(":") and not l.startswith((".", ";"))]
    probs = []
    W = 24
    for i, c in enumerate(ins):
        dist = 0
        j = i - 1
        while j >= 0 and dist < W:
            p = ins[j]
            need = 0; why = ""
            def req(n, w):
                nonlocal need, why
                if n > need: need, why = n, w
            if p.kind == "valu":
                if c.kind == "mfma" and vec(p.w) & c.r: req(2, "valu->mfma src")
                if c.kind == "mfma" and ("s", "exec") in p.w: req(4, "valu exec->mfma")
                if c.kind == "valu":
                    if p.trans and not c.trans and vec(p.w) & c.r: req(1, "trans->valu")
                    if c.dpp and vec(p.w) & c.r: req(2, "valu->dpp")
                    if c.dpp and ("s", "exec") in p.w: req(5, "exec->dpp")
                    if c.op.startswith(("v_readlane", "v_readfirstlane")) and vec(p.w) & c.r: req(1, "valu->readlane")
                    if c.op.startswith("v_permlane") and vec(p.w) & c.r: req(2, "valu->permlane")
                    if sca(p.w) & c.r:
                        req(4 if c.op.startswith(("v_readlane", "v_writelane", "v_div_fmas")) else 2, "valu sgpr->valu")
                    if ("sdwa" in p.op or "op_sel" in p.text) and not p.op.startswith(("v_pk", "v_fma_mix_f32")) and vec(p.w) & (c.r | c.w): req(1, "sdwa/opsel dst")
                if c.kind == "vmem" and sca(p.w) & c.r: req(5, "valu sgpr->vmem")
            if p.kind == "mfma":
                big = p.passes == 8
                if c.kind == "mfma":
                    if p.w & c.srcC:
                        if not (p.w == c.srcC and p.passes == c.passes): req(10 if big else 6, "mfma D->C overlap")
                    if p.w & (c.srcA | c.srcB): req(12 if big else 8, "mfma D->A/B")
                elif c.kind in ("valu", "ds", "vmem"):
                    if p.w & (c.r | c.w): req(12 if big else 8, "mfma D->valu/mem")
                    if c.kind == "valu" and p.srcC & c.w: req(7 if big else 3, "mfma C WAR")
            if p.kind == "vmem" and p.wide_data:
                if p.wide_data & c.w: req(2 if c.kind == "valu" else 1, "wide store WAR")
            if p.kind == "salu" and ("s", "m0") in p.w and c.kind == "vmem" and getattr(c, "lds", False): req(1, "m0->lds dma")
            if need > dist:
                probs.append(f"{name}: #{i} '{c.text}' needs {need} after #{j} '{p.text}' ({why}), has {dist}")
            dist += p.n if p.kind == "nop" else 1
            j -= 1
    vm, lg = [], []
    for i, c in enumerate(ins):
        if c.kind == "wait":
            m = re.search(r"vmcnt\((\d+)\)", c.text)
            if m:
                n = int(m.group(1)); vm = vm[len(vm) - n:] if n < len(vm) else vm
                if n == 0: vm = []
            m = re.search(r"lgkmcnt\((\d+)\)", c.text)
            if m:
                n = int(m.group(1))
                if n == 0: lg = []
                elif any(k == "smem" for _, _, k in lg): pass
                elif n < len(lg): lg = lg[len(lg) - n:]
            continue
        touched = c.r | c.w
        for d, t, k in vm:
            if d & touched and not (c.kind == "vmem" and getattr(c, "keeps", False) and not (d & c.r)):
                probs.append(f"{name}: #{i} '{c.text}' touches pending vmem dest of '{t}'")
        for d, t, k in lg:
            if d & touched: probs.append(f"{name}: #{i} '{c.text}' touches pending lgkm dest of '{t}'")
        if c.kind == "vmem":
            vm.append((set(c.w), c.text, "vmem"))
            if len(vm) > 63: probs.append(f"{name}: #{i} vmcnt overflow >63 (hardware stalls; counts suspicious)")
        if c.kind == "ds": lg.append((set(c.w), c.text, "ds"))
        if c.kind == "smem": lg.append((set(c.w), c.text, "smem"))
    if verbose:
        for p in probs[:8]: print("HAZARD", p)
        if len(probs) > 8: print(f"... {len(probs)} problems")
    return probs

def kernel_desc(name, vgpr, acc, sgpr=102):
    return f""".amdhsa_kernel {name}
  .amdhsa_next_free_vgpr {vgpr}
  .amdhsa_next_free_sgpr {sgpr}
  .amdhsa_accum_offset {acc}
  .amdhsa_group_segment_fixed_size 0
  .amdhsa_kernarg_size 80
  .amdhsa_user_sgpr_count 2
  .amdhsa_user_sgpr_kernarg_segment_ptr 1
  .amdhsa_system_sgpr_workgroup_id_x 1
  .amdhsa_float_denorm_mode_32 3
  .amdhsa_float_denorm_mode_16_64 3
.end_amdhsa_kernel
"""
def srd(a, d, ptr, nbytes, off=0):
    if off:
        a(f"s_add_u32 s{d}, s{ptr}, {off:#x}", f"s_addc_u32 s{d+1}, s{ptr+1}, 0")
    else:
        a(f"s_mov_b32 s{d}, s{ptr}", f"s_mov_b32 s{d+1}, s{ptr+1}")
    a(f"s_mov_b32 s{d+2}, {nbytes:#x}", f"s_mov_b32 s{d+3}, 0x20000")

import os
STAMPS = int(os.environ.get("STAMPS", "0"))
STAMP_BASE = 0x8000000
ST_S = 68
def stamp(a, k):
    if STAMPS:
        a(f"{'s_memrealtime' if STAMPS == 1 else 's_memtime'} s[{ST_S+2*k}:{ST_S+2*k+1}]")
def stamp_init(a):
    if STAMPS:
        for k in range(16): a(f"s_mov_b32 s{ST_S+2*k}, -1")
def stamp_flush(a, kern, nst, s_ws, s_wave, vt, s_tmp):
    if not STAMPS: return
    a("s_waitcnt vmcnt(0) lgkmcnt(0)")
    stamp(a, nst)
    a("s_waitcnt lgkmcnt(0)")
    if os.environ.get("DBGST"):
        lab = f"Ldbg{len(a.lines)}"
        a("s_cmp_lg_u32 s2, 8", f"s_cbranch_scc1 {lab}", f"s_cmp_lg_u32 s{s_wave}, {os.environ['DBGST']}", f"s_cbranch_scc1 {lab}")
        srd(a, s_tmp, 10, 256)
        a(f"v_mov_b32 v{vt+2}, 0", "s_mov_b64 exec, 1")
        for k in range(1, 15):
            a(f"s_sub_u32 s{s_tmp+4}, s{ST_S+2*k}, s{ST_S}", f"v_mov_b32 v{vt}, s{s_tmp+4}", f"buffer_store_dword v{vt}, v{vt+2}, s[{s_tmp}:{s_tmp+3}], 0 offen offset:{4+4*k}", "s_nop 1")
        a.label(lab)
        return
    srd(a, s_tmp, s_ws, 0x1000000, STAMP_BASE)
    a(f"s_lshl_b32 s{s_tmp+4}, s2, 3", f"s_add_u32 s{s_tmp+4}, s{s_tmp+4}, s{s_wave}", f"s_add_u32 s{s_tmp+4}, s{s_tmp+4}, {kern*4096}",
      f"s_lshl_b32 s{s_tmp+4}, s{s_tmp+4}, 7", f"v_mov_b32 v{vt+2}, 0", "s_mov_b64 exec, 1")
    for k in range(16):
        a(f"v_mov_b32 v{vt}, s{ST_S+2*k}", f"buffer_store_dword v{vt}, v{vt+2}, s[{s_tmp}:{s_tmp+3}], s{s_tmp+4} offen offset:{8*k}", "s_nop 1")
```

```python
import re

class Asm:
    def __init__(self):
        self.lines = []
    def __call__(self, *ls):
        for l in ls:
            if isinstance(l, (list, tuple)):
                self(*l)
            else:
                for x in l.split("\n"):
                    x = x.strip()
                    if x: self.lines.append(x)
        return self
    def label(self, n): self.lines.append(n + ":")
    def text(self):
        out = []
        for l in self.lines:
            out.append(l if (l.endswith(":") or l.startswith(".")) else "    " + l)
        return "\n".join(out) + "\n"

def vr(b, n=1, k="v"):
    return f"{k}{b}" if n == 1 else f"{k}[{b}:{b+n-1}]"
def ar(b, n=1): return vr(b, n, "a")
def sr(b, n=1): return vr(b, n, "s")

_REG = re.compile(r"\b([vas])(\d+)\b|\b([vas])\[(\d+):(\d+)\]")
def regs_of(op):
    op = op.strip()
    s = set()
    for m in _REG.finditer(op):
        if m.group(1): s.add((m.group(1), int(m.group(2))))
        else:
            for i in range(int(m.group(4)), int(m.group(5)) + 1): s.add((m.group(3), i))
    if re.search(r"\bvcc\b", op): s.add(("s", "vcc"))
    if re.search(r"\bexec\b", op): s.add(("s", "exec"))
    if re.search(r"\bm0\b", op): s.add(("s", "m0"))
    return s

TRANS = ("v_exp_", "v_log_", "v_rcp_", "v_rsq_", "v_sqrt_", "v_sin_", "v_cos_")
def split_ops(rest):
    ops, depth, cur = [], 0, ""
    for ch in rest:
        if ch == "[": depth += 1
        if ch == "]": depth -= 1
        if ch == "," and depth == 0:
            ops.append(cur.strip()); cur = ""
        else: cur += ch
    if cur.strip(): ops.append(cur.strip())
    return ops

class Ins:
    def __init__(self, text):
        self.text = text
        t = text.split(";")[0].strip()
        p = t.split(None, 1)
        self.op = p[0]
        ops = split_ops(p[1]) if len(p) > 1 else []
        self.ops = ops
        op = self.op
        self.kind = "other"; self.w = set(); self.r = set(); self.passes = 0
        self.srcA = self.srcB = self.srcC = set()
        self.wide_data = set()
        if op.startswith("v_mfma"):
            self.kind = "mfma"
            self.w = regs_of(ops[0]); self.srcA = regs_of(ops[1]); self.srcB = regs_of(ops[2]); self.srcC = regs_of(ops[3])
            self.r = self.srcA | self.srcB | self.srcC
            self.passes = 8 if "32x32" in op else 4
        elif op.startswith("v_"):
            self.kind = "valu"
            self.trans = op.startswith(TRANS)
            self.dpp = ("row_" in t or "quad_perm" in t or "_dpp" in op or "wave_" in t)
            if op.startswith("v_cmp"):
                self.w = regs_of(ops[0]); rs = ops[1:]
                if op.startswith("v_cmpx"): self.w.add(("s", "exec"))
            elif op.startswith(("v_add_co", "v_sub_co", "v_addc_co", "v_subb_co", "v_subrev_co", "v_div_scale")):
                self.w = regs_of(ops[0]) | regs_of(ops[1]); rs = ops[2:]
            elif op.startswith("v_permlane") and "swap" in op:
                self.w = regs_of(ops[0]) | regs_of(ops[1]); rs = ops[0:2]
            elif op.startswith("v_nop"):
                rs = []
            else:
                self.w = regs_of(ops[0]); rs = ops[1:]
            for o in rs: self.r |= regs_of(o)
            if op.startswith(("v_fmac", "v_pk_fmac", "v_dot2c", "v_writelane")) or "UNUSED_PRESERVE" in t or self.dpp:
                self.r |= regs_of(ops[0])
        elif op.startswith("ds_"):
            self.kind = "ds"
            if op.startswith(("ds_read", "ds_bpermute", "ds_permute", "ds_swizzle")) or "_rtn" in op:
                self.w = regs_of(ops[0])
                for o in ops[1:]: self.r |= regs_of(o)
            else:
                for o in ops: self.r |= regs_of(o)
        elif op.startswith(("buffer_", "global_")):
            self.kind = "vmem"
            self.lds = bool(re.search(r"\blds\b", t)) or "_lds_" in op
            if op.startswith(("buffer_wbl2", "buffer_inv")):
                pass
            elif "load" in op and not self.lds:
                self.w = regs_of(ops[0])
                for o in ops[1:]: self.r |= regs_of(o)
                if "d16" in op: self.keeps = True
            elif "atomic" in op and re.search(r"\bsc0\b", t):
                self.w = regs_of(ops[0])
                for o in ops: self.r |= regs_of(o)
            else:
                for o in ops: self.r |= regs_of(o)
                if self.lds: self.r.add(("s", "m0"))
                if "store" in op and ("x3" in op or "x4" in op):
                    self.wide_data = regs_of(ops[0] if op.startswith("buffer_") else ops[1])
        elif op.startswith(("s_load", "s_buffer_load", "s_memtime", "s_memrealtime", "s_atomic")):
            self.kind = "smem"; self.w = regs_of(ops[0])
            for o in ops[1:]: self.r |= regs_of(o)
        elif op in ("s_waitcnt",):
            self.kind = "wait"
        elif op.startswith("s_nop"):
            self.kind = "nop"; self.n = int(ops[0], 0) + 1
        elif op.startswith(("s_cbranch", "s_branch", "s_barrier", "s_endpgm", "s_setprio", "s_sleep")):
            self.kind = "ctl"
        elif op.startswith("s_cmp") or op.startswith("s_bitcmp"):
            self.kind = "salu"
            for o in ops: self.r |= regs_of(o)
        elif op.startswith("s_"):
            self.kind = "salu"; self.w = regs_of(ops[0])
            for o in ops[1:]: self.r |= regs_of(o)
            if "saveexec" in op: self.w.add(("s", "exec"))
            if op.startswith(("s_addk", "s_mulk")): self.r |= regs_of(ops[0])

def vec(s): return {x for x in s if x[0] in "va"}
def sca(s): return {x for x in s if x[0] == "s"}

def follow(lines, take):
    out = []; i = 0
    while i < len(lines):
        l = lines[i]; out.append(l)
        p = l.split()
        if p and (p[0] == "s_branch" or (p[0].startswith("s_cbranch") and any(t in p[1] for t in take))):
            try:
                i = lines.index(p[1] + ":", i + 1); continue
            except ValueError: pass
        i += 1
    return out

def check_trace(lines, name="", verbose=True, takes=((), ("",))):
    import os
    if int(os.environ.get("STAMPS", "0")): return []
    r = []
    for t in takes: r += check_trace1(follow(lines, t), name + str(t), verbose)
    return r

def check_trace1(lines, name="", verbose=True):
    import os
    if int(os.environ.get("STAMPS", "0")): return []
    ins = [Ins(l) for l in lines if l and not l.endswith(":") and not l.startswith((".", ";"))]
    probs = []
    W = 24
    for i, c in enumerate(ins):
        dist = 0
        j = i - 1
        while j >= 0 and dist < W:
            p = ins[j]
            need = 0; why = ""
            def req(n, w):
                nonlocal need, why
                if n > need: need, why = n, w
            if p.kind == "valu":
                if c.kind == "mfma" and vec(p.w) & c.r: req(2, "valu->mfma src")
                if c.kind == "mfma" and ("s", "exec") in p.w: req(4, "valu exec->mfma")
                if c.kind == "valu":
                    if p.trans and not c.trans and vec(p.w) & c.r: req(1, "trans->valu")
                    if c.dpp and vec(p.w) & c.r: req(2, "valu->dpp")
                    if c.dpp and ("s", "exec") in p.w: req(5, "exec->dpp")
                    if c.op.startswith(("v_readlane", "v_readfirstlane")) and vec(p.w) & c.r: req(1, "valu->readlane")
                    if c.op.startswith("v_permlane") and vec(p.w) & c.r: req(2, "valu->permlane")
                    if sca(p.w) & c.r:
                        req(4 if c.op.startswith(("v_readlane", "v_writelane", "v_div_fmas")) else 2, "valu sgpr->valu")
                    if ("sdwa" in p.op or "op_sel" in p.text) and not p.op.startswith(("v_pk", "v_fma_mix_f32")) and vec(p.w) & (c.r | c.w): req(1, "sdwa/opsel dst")
                if c.kind == "vmem" and sca(p.w) & c.r: req(5, "valu sgpr->vmem")
            if p.kind == "mfma":
                big = p.passes == 8
                if c.kind == "mfma":
                    if p.w & c.srcC:
                        if not (p.w == c.srcC and p.passes == c.passes): req(10 if big else 6, "mfma D->C overlap")
                    if p.w & (c.srcA | c.srcB): req(12 if big else 8, "mfma D->A/B")
                elif c.kind in ("valu", "ds", "vmem"):
                    if p.w & (c.r | c.w): req(12 if big else 8, "mfma D->valu/mem")
                    if c.kind == "valu" and p.srcC & c.w: req(7 if big else 3, "mfma C WAR")
            if p.kind == "vmem" and p.wide_data:
                if p.wide_data & c.w: req(2 if c.kind == "valu" else 1, "wide store WAR")
            if p.kind == "salu" and ("s", "m0") in p.w and c.kind == "vmem" and getattr(c, "lds", False): req(1, "m0->lds dma")
            if need > dist:
                probs.append(f"{name}: #{i} '{c.text}' needs {need} after #{j} '{p.text}' ({why}), has {dist}")
            dist += p.n if p.kind == "nop" else 1
            j -= 1
    vm, lg = [], []
    for i, c in enumerate(ins):
        if c.kind == "wait":
            m = re.search(r"vmcnt\((\d+)\)", c.text)
            if m:
                n = int(m.group(1)); vm = vm[len(vm) - n:] if n < len(vm) else vm
                if n == 0: vm = []
            m = re.search(r"lgkmcnt\((\d+)\)", c.text)
            if m:
                n = int(m.group(1))
                if n == 0: lg = []
                elif any(k == "smem" for _, _, k in lg): pass
                elif n < len(lg): lg = lg[len(lg) - n:]
            continue
        touched = c.r | c.w
        for d, t, k in vm:
            if d & touched and not (c.kind == "vmem" and getattr(c, "keeps", False) and not (d & c.r)):
                probs.append(f"{name}: #{i} '{c.text}' touches pending vmem dest of '{t}'")
        for d, t, k in lg:
            if d & touched: probs.append(f"{name}: #{i} '{c.text}' touches pending lgkm dest of '{t}'")
        if c.kind == "vmem":
            vm.append((set(c.w), c.text, "vmem"))
            if len(vm) > 63: probs.append(f"{name}: #{i} vmcnt overflow >63 (hardware stalls; counts suspicious)")
        if c.kind == "ds": lg.append((set(c.w), c.text, "ds"))
        if c.kind == "smem": lg.append((set(c.w), c.text, "smem"))
    if verbose:
        for p in probs[:8]: print("HAZARD", p)
        if len(probs) > 8: print(f"... {len(probs)} problems")
    return probs

def kernel_desc(name, vgpr, acc, sgpr=102):
    return f""".amdhsa_kernel {name}
  .amdhsa_next_free_vgpr {vgpr}
  .amdhsa_next_free_sgpr {sgpr}
  .amdhsa_accum_offset {acc}
  .amdhsa_group_segment_fixed_size 0
  .amdhsa_kernarg_size 80
  .amdhsa_user_sgpr_count 2
  .amdhsa_user_sgpr_kernarg_segment_ptr 1
  .amdhsa_system_sgpr_workgroup_id_x 1
  .amdhsa_float_denorm_mode_32 3
  .amdhsa_float_denorm_mode_16_64 3
.end_amdhsa_kernel
"""
def srd(a, d, ptr, nbytes, off=0):
    if off:
        a(f"s_add_u32 s{d}, s{ptr}, {off:#x}", f"s_addc_u32 s{d+1}, s{ptr+1}, 0")
    else:
        a(f"s_mov_b32 s{d}, s{ptr}", f"s_mov_b32 s{d+1}, s{ptr+1}")
    a(f"s_mov_b32 s{d+2}, {nbytes:#x}", f"s_mov_b32 s{d+3}, 0x20000")

import os
STAMPS = int(os.environ.get("STAMPS", "0"))
STAMP_BASE = 0x8000000
ST_S = 68
def stamp(a, k):
    if STAMPS:
        a(f"{'s_memrealtime' if STAMPS == 1 else 's_memtime'} s[{ST_S+2*k}:{ST_S+2*k+1}]")
def stamp_init(a):
    if STAMPS:
        for k in range(16): a(f"s_mov_b32 s{ST_S+2*k}, -1")
def stamp_flush(a, kern, nst, s_ws, s_wave, vt, s_tmp):
    if not STAMPS: return
    a("s_waitcnt vmcnt(0) lgkmcnt(0)")
    stamp(a, nst)
    a("s_waitcnt lgkmcnt(0)")
    if os.environ.get("DBGST"):
        lab = f"Ldbg{len(a.lines)}"
        a("s_cmp_lg_u32 s2, 8", f"s_cbranch_scc1 {lab}", f"s_cmp_lg_u32 s{s_wave}, {os.environ['DBGST']}", f"s_cbranch_scc1 {lab}")
        srd(a, s_tmp, 10, 256)
        a(f"v_mov_b32 v{vt+2}, 0", "s_mov_b64 exec, 1")
        for k in range(1, 15):
            a(f"s_sub_u32 s{s_tmp+4}, s{ST_S+2*k}, s{ST_S}", f"v_mov_b32 v{vt}, s{s_tmp+4}", f"buffer_store_dword v{vt}, v{vt+2}, s[{s_tmp}:{s_tmp+3}], 0 offen offset:{4+4*k}", "s_nop 1")
        a.label(lab)
        return
    srd(a, s_tmp, s_ws, 0x1000000, STAMP_BASE)
    a(f"s_lshl_b32 s{s_tmp+4}, s2, 3", f"s_add_u32 s{s_tmp+4}, s{s_tmp+4}, s{s_wave}", f"s_add_u32 s{s_tmp+4}, s{s_tmp+4}, {kern*4096}",
      f"s_lshl_b32 s{s_tmp+4}, s{s_tmp+4}, 7", f"v_mov_b32 v{vt+2}, 0", "s_mov_b64 exec, 1")
    for k in range(16):
        a(f"v_mov_b32 v{vt}, s{ST_S+2*k}", f"buffer_store_dword v{vt}, v{vt+2}, s[{s_tmp}:{s_tmp+3}], s{s_tmp+4} offen offset:{8*k}", "s_nop 1")
```

```python
import sys, importlib
from asmlib import kernel_desc
HEAD = open("recurrent_scan__softmax_full_mha__glu_gated_glu__prompt.s.ref").read().split("; Override launch")[0]
def assemble(kernels):
    out = HEAD
    import os
    if os.environ.get("PLAIN") and len(kernels) == 1:
        k = kernels[0]
        out += f"; @launch grid=({k['grid']},1,1) block=({k['block']},1,1) lds={k['lds']}\n"
    for k in (kernels if not os.environ.get("PLAIN") else []):
        out += f"; @launch kernel={k['name']} grid=({k['grid']},1,1) block=({k['block']},1,1) lds={k['lds']}\n"
    out += '.amdgcn_target "amdgcn-amd-amdhsa--gfx950"\n.text\n'
    seen = set()
    for k in kernels:
        if k["name"] in seen: continue
        seen.add(k["name"])
        if len(seen) == 2: out += "code_begin:\n"
        out += f".globl {k['name']}\n.p2align 8\n.type {k['name']},@function\n" + k["text"]
    out += 'code_end:\n.section .rodata,"a"\n'
    seen = set()
    for k in kernels:
        if k["name"] in seen: continue
        seen.add(k["name"])
        out += ".p2align 6\n" + kernel_desc(k["name"], k["vgpr"], k["acc"])
    return out
if __name__ == "__main__":
    names = sys.argv[2:]
    ks = [importlib.import_module(n).gen() for n in names]
    open(sys.argv[1], "w").write(assemble(ks))
    print("wrote", sys.argv[1])
```
